```python
import torch

def _softmax(x, axis=-1):
    return torch.softmax(x, dim=axis)
def _gelu(x):
    return torch.nn.functional.gelu(x, approximate="tanh")
def _silu(x):
    return torch.nn.functional.silu(x)
def _sigmoid(x):
    return torch.sigmoid(x)
def _layernorm(x, axis=-1, eps=1e-5):
    m = x.mean(dim=axis, keepdim=True)
    v = x.var(dim=axis, keepdim=True, unbiased=False)
    return (x - m) / torch.sqrt(v + eps)
def _scatter_add(tgt, idx, src, axis=0):
    return tgt.clone().index_add_(axis, idx, src)
def _segment_sum(src, seg, n):
    out = torch.zeros((n,) + src.shape[1:], dtype=src.dtype)
    return out.index_add_(0, seg, src)
def _pad(x, pw):
    flat = tuple(v for pair in reversed(pw) for v in pair)
    return torch.nn.functional.pad(x, flat)

kernel_name = 'concat_heads__linear_kernel_hedgehog__mha_block__prompt'

def setup_inputs():

    _w = (lambda a: (lambda t: t.to(torch.bfloat16) if t.is_floating_point() else t)(torch.as_tensor(a)))
    def _A_setup():
        B, S, D, H = 1, 2048, 1024, 32
        Dh = D // H
        return {
            "x": _w((lambda *s: torch.randn(*s, dtype=torch.bfloat16) * 0.4)(B, S, D)),
            "wqkv": _w((lambda *s: torch.randn(*s, dtype=torch.bfloat16) * 0.4)(D, 3 * D)),
            "w_phi": _w((lambda *s: torch.randn(*s, dtype=torch.bfloat16) * 0.4)(H, Dh, Dh) * (Dh ** -0.5)),
            "wo": _w((lambda *s: torch.randn(*s, dtype=torch.bfloat16) * 0.05)(D, D)),
        }
    _A_in = _A_setup()

    def _B_setup():
        B, S, D, H = 1, 2048, 1024, 32
        return {
            "x": _w((lambda *s: torch.randn(*s, dtype=torch.bfloat16) * 0.2)(B, S, D)),
            "wqkv": _w((lambda *s: torch.randn(*s, dtype=torch.bfloat16) * 0.2)(D, 3 * D)),
            "wo": _w((lambda *s: torch.randn(*s, dtype=torch.bfloat16) * 0.05)(D, D)),
        }
    _B_in = _B_setup()

    return {
        "A_x": _A_in["x"],
        "A_wqkv": _A_in["wqkv"],
        "A_w_phi": _A_in["w_phi"],
        "A_wo": _A_in["wo"],
        "B_x": _B_in["x"],
        "B_wqkv": _B_in["wqkv"],
        "B_wo": _B_in["wo"],
    }

def reference(A_x, A_wqkv, A_w_phi, A_wo, B_x, B_wqkv, B_wo):
    def _A_ref(x, wqkv, w_phi, wo):
        B, S, D = x.shape
        H = 32; Dh = D // H
        qkv = (lambda x, *d: x.permute(*d))((x @ wqkv).reshape(B, S, 3, H, Dh), 2, 0, 3, 1, 4)
        q, k, v = qkv[0], qkv[1], qkv[2]
        pq = torch.einsum("bhsd,hdf->bhsf", q, w_phi)
        pk = torch.einsum("bhsd,hdf->bhsf", k, w_phi)
        phi_q = torch.concatenate([_softmax(pq, axis=-1), _softmax(-pq, axis=-1)], axis=-1)
        phi_k = torch.concatenate([_softmax(pk, axis=-1), _softmax(-pk, axis=-1)], axis=-1)
        kv = torch.einsum("bhsf,bhsd->bhfd", phi_k, v)
        z  = torch.einsum("bhsf->bhf", phi_k)
        num = torch.einsum("bhqf,bhfd->bhqd", phi_q, kv)
        den = torch.einsum("bhqf,bhf->bhq", phi_q, z)[..., None] + 1e-6
        o = num / den
        return (lambda x, *d: x.permute(*d))(o, 0, 2, 1, 3).reshape(B, S, D) @ wo

    def _B_ref(x, wqkv, wo):
        B, S, D = x.shape
        H = 32
        Dh = D // H
        qkv = (lambda x, *d: x.permute(*d))((x @ wqkv).reshape(B, S, 3, H, Dh), 2, 0, 3, 1, 4)
        q, k, v = qkv[0], qkv[1], qkv[2]
        scores = torch.einsum("bhqd,bhkd->bhqk", q, k) * (Dh ** -0.5)
        p = _softmax(scores, axis=-1)
        o = torch.einsum("bhqk,bhkd->bhqd", p, v)
        return (lambda x, *d: x.permute(*d))(o, 0, 2, 1, 3).reshape(B, S, D) @ wo

    a = _A_ref(A_x, A_wqkv, A_w_phi, A_wo)
    b = _B_ref(B_x, B_wqkv, B_wo)
    return torch.concatenate([a, b], axis=-1)
```

```python
class Asm:
    def __init__(self):
        self.lines = []
        self.nlabel = 0
    def __call__(self, s, *a):
        if a:
            s = s % a
        for l in s.strip("\n").split("\n"):
            l = l.strip()
            if not l:
                continue
            if l.endswith(":") or l.startswith("."):
                self.lines.append(l)
            else:
                self.lines.append("    " + l)
    def c(self, s):
        self.lines.append("    ; " + s)
    def label(self, base="L"):
        self.nlabel += 1
        return "%s_%d" % (base, self.nlabel)
    def text(self):
        return "\n".join(self.lines) + "\n"

def vr(b, n=1):
    return "v%d" % b if n == 1 else "v[%d:%d]" % (b, b + n - 1)
def sr(b, n=1):
    return "s%d" % b if n == 1 else "s[%d:%d]" % (b, b + n - 1)

class Regs:
    def __init__(self, start=0, limit=256):
        self.n = start
        self.limit = limit
        self.hi = start
        self.names = {}
    def alloc(self, n=1, align=None, name=None):
        if align is None:
            align = 1 if n == 1 else (2 if n == 2 else 4)
        b = (self.n + align - 1) // align * align
        self.n = b + n
        self.hi = max(self.hi, self.n)
        assert self.n <= self.limit, "out of registers (%s)" % name
        if name:
            self.names[name] = b
        return b
    def mark(self):
        return self.n
    def release(self, m):
        self.n = m

def mfma32(d, a, b, c=None):
    cs = vr(d, 16) if c is None else (c if isinstance(c, str) else vr(c, 16))
    return "v_mfma_f32_32x32x16_bf16 %s, %s, %s, %s" % (vr(d, 16), vr(a, 4), vr(b, 4), cs)
def mfma16(d, a, b, c=None):
    cs = vr(d, 4) if c is None else (c if isinstance(c, str) else vr(c, 4))
    return "v_mfma_f32_16x16x32_bf16 %s, %s, %s, %s" % (vr(d, 4), vr(a, 4), vr(b, 4), cs)

def kernel_header(a, name):
    a(".text\n.globl %s\n.p2align 8\n.type %s,@function\n%s:" % (name, name, name))

def kernel_desc(a, name, nv, ns=102):
    nv = max(nv, 8)
    acc = (nv + 3) // 4 * 4
    a(""".section .rodata,"a"
.p2align 6
.amdhsa_kernel %s
.amdhsa_next_free_vgpr %d
.amdhsa_next_free_sgpr %d
.amdhsa_accum_offset %d
.amdhsa_group_segment_fixed_size 0
.amdhsa_kernarg_size 80
.amdhsa_user_sgpr_count 2
.amdhsa_user_sgpr_kernarg_segment_ptr 1
.amdhsa_system_sgpr_workgroup_id_x 1
.end_amdhsa_kernel""" % (name, nv, ns, acc))

def interleave(main, fill, start=0, per=None):
    out = []
    n = len(main)
    m = len(fill)
    slots = n - start
    k = 0
    for i, x in enumerate(main):
        out.append(x)
        if i >= start:
            want = ((i - start + 1) * m + slots - 1) // slots if per is None else min(m, (i - start + 1) * per)
            while k < want and k < m:
                out.append(fill[k]); k += 1
    while k < m:
        out.append(fill[k]); k += 1
    return out


STAMP_BASE = 64 << 20
class Stamps:
    def __init__(self, a, on, kidx):
        self.a = a; self.on = on; self.n = 0; self.kidx = kidx
    def stamp(self):
        if not self.on: return
        assert self.n < 6
        self.a("s_memrealtime s[%d:%d]" % (70 + 2 * self.n, 71 + 2 * self.n))
        if self.n == 0: self.a("s_memtime s[88:89]")
        self.n += 1
    def dump(self, srd, swave, vtmp):
        if not self.on: return
        a = self.a
        a("s_mov_b64 exec, -1")
        a("s_waitcnt vmcnt(0)")
        a("s_memrealtime s[84:85]")
        a("s_memtime s[90:91]")
        a("s_waitcnt lgkmcnt(0)")
        a("s_sub_u32 s90, s90, s88")
        for i in range(6):
            a("v_mov_b32 v%d, s%d" % (vtmp + i, 70 + 2 * i if i < self.n else 84))
        a("v_mov_b32 v%d, s90" % (vtmp + 6))
        a("v_mov_b32 v%d, s84" % (vtmp + 7))
        a("s_lshl_b32 s86, s2, 9\ns_lshl_b32 s87, %s, 5\ns_add_u32 s86, s86, s87\ns_add_u32 s86, s86, %d" % (swave, STAMP_BASE + self.kidx * (1 << 18)))
        a("v_mov_b32 v%d, 0" % (vtmp + 8))
        a("s_mov_b64 exec, 1")
        a("buffer_store_dwordx4 %s, v%d, %s, s86 offen" % (vr(vtmp, 4), vtmp + 8, srd))
        a("buffer_store_dwordx4 %s, v%d, %s, s86 offen offset:16" % (vr(vtmp + 4, 4), vtmp + 8, srd))
```

```python
from asmlib import *
from layout import *
from gemm1 import softmax_pm

BLOCK = 512
CH = 32768
KVF = 4 * CH
FLAG = KVF + 8192
LDS2 = FLAG + 256

def gen_attn(a, name="attn_kernel", stamps=False, force_slow=False):
    kernel_header(a, name)
    END = a.label("ATEND")
    V = Regs(1, 256)
    v_lane = V.alloc(); v16 = V.alloc()
    v_cur = V.alloc(); v_nxt = V.alloc()
    t = [V.alloc() for _ in range(8)]
    Q = V.alloc(8, 4); KF = V.alloc(8, 4); VF = V.alloc(8, 4); P = V.alloc(8, 4)
    S = [V.alloc(16, 4), V.alloc(16, 4)]
    O = V.alloc(16, 4); L = V.alloc(4, 4); SEL = V.alloc(4, 4)
    QA = V.alloc(8, 4); PHR = V.alloc(16, 4); KVR = V.alloc(32, 4); ZR = V.alloc(32, 4)
    ST = Stamps(a, stamps, 1)

    a("s_cmp_ge_u32 s2, 256\ns_cbranch_scc1 %s" % END)
    ST.stamp()
    a("""
    s_load_dwordx2 s[28:29], s[0:1], 16
    s_load_dwordx2 s[30:31], s[0:1], 72
    v_lshrrev_b32 v%d, 6, v0
    v_and_b32 v%d, 63, v0
    s_and_b32 s7, s2, 7
    v_readfirstlane_b32 s6, v%d
    s_lshr_b32 s49, s2, 3
    s_lshl_b32 s4, s7, 2
    s_lshr_b32 s50, s49, 3
    s_add_u32 s4, s4, s50
    s_and_b32 s5, s49, 7
    v_lshlrev_b32 v%d, 4, v%d
    """ % (t[0], v_lane, t[0], v16, v_lane))
    a("s_lshl_b32 s52, s5, 3\ns_add_u32 s52, s52, s6")
    a("s_lshl_b32 s53, s4, 6\ns_add_u32 s53, s53, s52\ns_lshl_b32 s53, s53, 11")
    a("s_lshl_b32 s40, s4, 18\ns_lshl_b32 s7, s6, 12\ns_add_u32 s40, s40, s7\ns_add_u32 s40, s40, %d" % WS_KVB)
    a("s_mov_b32 s41, s40")
    a("s_lshl_b32 s44, s6, 12")
    a("s_waitcnt lgkmcnt(0)")
    a("""
    s_mov_b32 s16, s30
    s_mov_b32 s17, s31
    s_mov_b32 s18, %d
    s_mov_b32 s19, 0x20000
    s_mov_b32 s20, s28
    s_mov_b32 s21, s29
    s_mov_b32 s22, 0x10000
    s_mov_b32 s23, 0x20000
    """ % WS_SIZE)
    def dma_chunk(m0expr):
        a(m0expr)
        a("s_nop 0")
        for i in range(4):
            a("buffer_load_dwordx4 v%d, s[16:19], s40 offen offset:%d lds" % (v16, i * 1024))
        a("s_add_u32 s40, s40, %d" % CH)
    a("s_add_u32 s54, s53, %d" % WS_QB)
    dma_chunk("s_mov_b32 m0, s44")
    for tt in range(2):
        a("buffer_load_dwordx4 %s, v%d, s[16:19], s54 offen offset:%d" % (vr(Q + 4 * tt, 4), v16, tt * 1024))
    dma_chunk("s_add_u32 m0, s44, %d" % CH)
    a("s_add_u32 s54, s53, %d" % WS_QA)
    for tt in range(2):
        a("buffer_load_dwordx4 %s, v%d, s[16:19], s54 offen offset:%d" % (vr(QA + 4 * tt, 4), v16, tt * 1024))
    a("s_lshl_b32 s54, s4, 16\ns_lshl_b32 s7, s6, 10\ns_add_u32 s54, s54, s7\ns_add_u32 s54, s54, %d" % WS_KVP)
    for m in range(8):
        a("buffer_load_dwordx4 %s, v%d, s[16:19], s54 offen" % (vr(KVR + 4 * m, 4), v16))
        a("s_add_u32 s54, s54, 8192")
    a("v_lshrrev_b32 v%d, 5, v%d" % (t[1], v_lane))
    a("v_lshlrev_b32 v%d, 7, v%d" % (t[2], t[1]))
    a("s_lshl_b32 s54, s4, 11\ns_lshl_b32 s7, s6, 4\ns_add_u32 s54, s54, s7\ns_add_u32 s54, s54, %d" % WS_ZP)
    for m in range(8):
        a("buffer_load_dwordx4 %s, v%d, s[16:19], s54 offen offset:%d" % (vr(ZR + 4 * m, 4), t[2], m * 256))
    a("v_and_b32 v%d, 31, v%d" % (t[0], v_lane))
    a("v_lshlrev_b32 v%d, 1, v%d" % (t[3], t[0]))
    a("v_lshl_add_u32 v%d, v%d, 8, v%d" % (t[3], t[1], t[3]))
    a("s_lshl_b32 s49, s4, 11")
    for r in range(16):
        d = 8 * (r >> 2) + (r & 3)
        a("buffer_load_ushort v%d, v%d, s[20:23], s49 offen offset:%d" % (PHR + r, t[3], d * 64))
    dma_chunk("s_add_u32 m0, s44, %d" % (2 * CH))
    n_after_q = 4 + 2 + 8 + 8 + 16 + 4
    a("v_lshrrev_b32 v%d, 2, v%d" % (t[4], v_lane))
    a("v_xor_b32 v%d, v%d, v%d" % (t[4], t[4], v_lane))
    a("v_and_b32 v%d, 4, v%d" % (t[4], t[4]))
    a("v_and_b32 v%d, 3, v%d" % (t[5], v_lane))
    a("v_or_b32 v%d, v%d, v%d" % (t[4], t[4], t[5]))
    a("v_cmp_eq_u32 vcc, 0, v%d" % t[4])
    a("v_mov_b32 v%d, 0x3f803f80" % t[5])
    a("s_nop 0")
    for i in range(4):
        a("v_cndmask_b32 v%d, 0, v%d, vcc" % (SEL + i, t[5]))
    a("v_mov_b32 v%d, %d\nv_mov_b32 v%d, 0" % (t[6], FLAG, t[7]))
    a("ds_write_b32 v%d, v%d" % (t[6], t[7]))
    a("v_mov_b32 v%d, v%d" % (v_cur, v16))
    a("v_add_u32 v%d, %d, v%d" % (v_nxt, CH, v16))
    a("s_mov_b32 s36, %d" % CH)
    a("s_mov_b32 s37, %d" % (3 * CH))
    a("s_waitcnt vmcnt(%d) lgkmcnt(0)" % n_after_q)
    a("s_barrier")
    ST.stamp()

    def rdK(j):
        base, jj = (v_cur, j) if j < 8 else (v_nxt, j - 8)
        return ["ds_read_b128 %s, v%d offset:%d" % (vr(KF + 4 * tt, 4), base, jj * 4096 + tt * 1024) for tt in range(2)]
    def rdV(j):
        base, jj = (v_cur, j) if j < 8 else (v_nxt, j - 8)
        return ["ds_read_b128 %s, v%d offset:%d" % (vr(VF + 4 * tt, 4), base, jj * 4096 + 2048 + tt * 1024) for tt in range(2)]

    for x in rdK(0): a(x)
    for i in range(16): a("v_mov_b32 v%d, 0" % (O + i))
    for i in range(4): a("v_mov_b32 v%d, 0" % (L + i))
    for i in range(4, 8): a("v_mov_b32 v%d, 0" % (P + i))
    for i in range(4, 8): a("v_mov_b32 v%d, 0" % (VF + i))
    a("s_waitcnt lgkmcnt(0)")
    a(mfma32(S[0], KF, Q, "0")); a(mfma32(S[0], KF + 4, Q + 4))
    for x in rdK(1): a(x)
    a(rdV(0)[0])
    a("s_nop 7\ns_nop 3")

    def tile(j, last_chunk):
        Sc, Sn = S[j & 1], S[1 - (j & 1)]
        has_next = not (last_chunk and j == 7)
        has_k2 = not (last_chunk and j >= 6)
        e = lambda r: "v_exp_f32 v%d, v%d" % (Sc + r, Sc + r)
        c = lambda i: "v_cvt_pk_bf16_f32 v%d, v%d, v%d" % (P + i, Sc + 2 * i, Sc + 2 * i + 1)
        a("s_waitcnt lgkmcnt(1)")
        if has_next:
            a(mfma32(Sn, KF, Q, "0"))
        a(e(0))
        a(mfma32(O, VF + 4, P + 4))
        a(rdV(j)[1])
        a(e(1)); a(e(2))
        a(mfma16(L, SEL, P + 4))
        a(e(3)); a(c(0)); a(e(4))
        if has_next:
            a(mfma32(Sn, KF + 4, Q + 4))
        if j == 6 and not last_chunk:
            a("s_waitcnt vmcnt(0)")
            a("s_barrier")
        if has_k2:
            for x in rdK(j + 2): a(x)
        if j == 6 and not last_chunk:
            SK = a.label("ATSK")
            a("s_cmp_ge_u32 s48, 5\ns_cbranch_scc1 %s" % SK)
            dma_chunk("s_add_u32 m0, s44, s37")
            a("s_add_u32 s37, s37, %d\ns_and_b32 s37, s37, %d" % (CH, 4 * CH - 1))
            a(SK + ":")
        a(c(1)); a(e(5)); a(e(6)); a(e(7)); a(c(2)); a(c(3)); a(e(8)); a(e(9))
        a("s_waitcnt lgkmcnt(%d)" % (3 if has_k2 else 1))
        a(mfma32(O, VF, P))
        if has_next:
            a(rdV(j + 1)[0])
        a(e(10)); a(e(11))
        a(mfma16(L, SEL, P))
        a(c(4)); a(e(12)); a(c(5)); a(e(13)); a(e(14)); a(e(15)); a(c(6)); a(c(7))

    a("s_mov_b32 s48, 0")
    LOOP = a.label("ATLOOP")
    a(".p2align 6\n%s:" % LOOP)
    for j in range(8): tile(j, False)
    a("v_mov_b32 v%d, v%d" % (v_cur, v_nxt))
    a("s_add_u32 s36, s36, %d\ns_and_b32 s36, s36, %d" % (CH, 4 * CH - 1))
    a("v_add_u32 v%d, s36, v%d" % (v_nxt, v16))
    a("s_add_u32 s48, s48, 1\ns_cmp_lt_u32 s48, 7\ns_cbranch_scc1 %s" % LOOP)
    for j in range(8): tile(j, True)
    a("s_waitcnt lgkmcnt(0)\ns_nop 0")
    a(mfma32(O, VF + 4, P + 4))
    a(mfma16(L, SEL, P + 4))
    ST.stamp()
    for R in (KVR, ZR):
        for m in (0, 2, 4, 6):
            for i in range(4):
                a("v_add_f32 v%d, v%d, v%d" % (R + 4 * m + i, R + 4 * m + i, R + 4 * m + 4 + i))
        for m in (0, 4):
            for i in range(4):
                a("v_add_f32 v%d, v%d, v%d" % (R + 4 * m + i, R + 4 * m + i, R + 4 * m + 8 + i))
        for i in range(4):
            a("v_add_f32 v%d, v%d, v%d" % (R + i, R + i, R + 16 + i))
        a("v_cvt_pk_bf16_f32 v%d, v%d, v%d" % (R, R, R + 1))
        a("v_cvt_pk_bf16_f32 v%d, v%d, v%d" % (R + 1, R + 2, R + 3))
    a("s_lshr_b32 s7, s6, 1\ns_lshl_b32 s7, s7, 10\ns_and_b32 s49, s6, 1\ns_lshl_b32 s49, s49, 3\ns_add_u32 s7, s7, s49\ns_add_u32 s7, s7, %d" % KVF)
    a("v_add_u32 v%d, s7, v%d" % (t[0], v16))
    a("ds_write_b64 v%d, %s" % (t[0], vr(KVR, 2)))
    a("ds_write_b64 v%d, %s offset:4096" % (t[0], vr(ZR, 2)))
    a("s_mov_b32 s57, 0x%08x\ns_mov_b32 s58, 0x%08x" % (f2u(2.0 ** -40), f2u(2.0 ** 100)))
    a("v_cmp_nle_f32 s[60:61], s57, v%d" % L)
    a("v_cmp_nge_f32 s[62:63], s58, v%d" % L)
    a("s_or_b64 s[60:61], s[60:61], s[62:63]")
    a("v_mov_b32 v%d, 0x207" % t[1])
    for i in range(16):
        a("v_cmp_class_f32 s[62:63], v%d, v%d" % (O + i, t[1]))
        a("s_or_b64 s[60:61], s[60:61], s[62:63]")
    if force_slow:
        a("s_mov_b64 s[60:61], -1")
    OK1 = a.label("ATOK")
    a("s_cmp_eq_u64 s[60:61], 0\ns_cbranch_scc1 %s" % OK1)
    a("v_mov_b32 v%d, 1" % t[7])
    a("ds_write_b32 v%d, v%d" % (t[6], t[7]))
    a(OK1 + ":")
    a("s_waitcnt lgkmcnt(0)\ns_barrier")
    a("ds_read_b32 v%d, v%d" % (t[7], t[6]))
    KVA, ZA = KVR, ZR
    a("v_add_u32 v%d, %d, v%d" % (t[0], KVF, v16))
    for i in range(4):
        a("ds_read_b128 %s, v%d offset:%d" % (vr(KVA + 4 * i, 4), t[0], i * 1024))
    for i in range(4):
        a("ds_read_b128 %s, v%d offset:%d" % (vr(ZA + 4 * i, 4), t[0], 4096 + i * 1024))
    a("s_waitcnt lgkmcnt(8)")
    a("v_readfirstlane_b32 s7, v%d" % t[7])
    SLOW = a.label("ATSLOW"); FIN = a.label("ATFIN")
    a("s_cmp_lg_u32 s7, 0\ns_cbranch_scc1 %s" % SLOW)
    a(FIN + ":")
    a("v_rcp_f32 v%d, v%d" % (t[1], L))
    a("s_lshl_b32 s54, s52, 5\ns_add_u32 s54, s54, s4\ns_lshl_b32 s54, s54, 11\ns_add_u32 s54, s54, %d\ns_add_u32 s55, s54, %d" % (WS_O, 4 * MB))
    for i in range(16):
        a("v_mul_f32 v%d, v%d, v%d" % (O + i, t[1], O + i))
    for i in range(8):
        a("v_cvt_pk_bf16_f32 v%d, v%d, v%d" % (P + i, O + 2 * i, O + 2 * i + 1))
    for tt in range(2):
        a("buffer_store_dwordx4 %s, v%d, s[16:19], s55 offen offset:%d" % (vr(P + 4 * tt, 4), v16, tt * 1024))
    PHI = KF
    for i in range(8):
        a("v_lshl_or_b32 v%d, v%d, 16, v%d" % (PHI + i, PHR + 2 * i + 1, PHR + 2 * i))
    a("s_mov_b32 s57, 0x%08x" % f2u(LOG2E))
    a("s_nop 0")
    a(mfma32(S[0], PHI, QA, "0")); a(mfma32(S[0], PHI + 4, QA + 4))
    a("s_nop 15")
    PP, PM = Q, VF
    softmax_pm(a, S[0], S[1], PP, PM, t[0], t[1], t[2], t[3], t[4], t[5], "s57")
    a("s_waitcnt lgkmcnt(0)\ns_nop 1")
    a(mfma32(S[0], KVA, PP, "0")); a(mfma32(S[1], ZA, PP, "0"))
    a(mfma32(S[0], KVA + 4, PP + 4)); a(mfma32(S[1], ZA + 4, PP + 4))
    a(mfma32(S[0], KVA + 8, PM)); a(mfma32(S[1], ZA + 8, PM))
    a(mfma32(S[0], KVA + 12, PM + 4)); a(mfma32(S[1], ZA + 12, PM + 4))
    a("s_nop 15")
    a("v_add_f32 v%d, 0x%08x, v%d" % (t[0], f2u(1e-6), S[1]))
    a("v_rcp_f32 v%d, v%d" % (t[0], t[0]))
    a("s_nop 0")
    for i in range(16):
        a("v_mul_f32 v%d, v%d, v%d" % (S[0] + i, t[0], S[0] + i))
    for i in range(8):
        a("v_cvt_pk_bf16_f32 v%d, v%d, v%d" % (QA + i, S[0] + 2 * i, S[0] + 2 * i + 1))
    for tt in range(2):
        a("buffer_store_dwordx4 %s, v%d, s[16:19], s54 offen offset:%d" % (vr(QA + 4 * tt, 4), v16, tt * 1024))
    ST.dump("s[16:19]", "s6", S[0])
    a(END + ":")
    a("s_endpgm")

    a(SLOW + ":")
    m, mnew, al, u0, ls = t[0], t[1], t[2], t[3], t[4]
    a("s_waitcnt lgkmcnt(0)")
    a("s_mov_b32 s40, s41")
    a("v_mov_b32 v%d, 0xff7fffff" % m)
    a("v_mov_b32 v%d, 0" % ls)
    for i in range(16): a("v_mov_b32 v%d, 0" % (O + i))
    a("s_mov_b32 s48, 0")
    SL1 = a.label("ATSL"); SL2 = a.label("ATSL")
    a(SL1 + ":")
    a("s_barrier")
    dma_chunk("s_mov_b32 m0, s44")
    a("s_waitcnt vmcnt(0)\ns_barrier")
    a("v_mov_b32 v%d, v%d" % (v_cur, v16))
    a("s_mov_b32 s49, 0")
    a(SL2 + ":")
    for x in rdK(0) + rdV(0): a(x)
    a("s_waitcnt lgkmcnt(0)")
    X = S[0]
    a(mfma32(X, KF, Q, "0")); a(mfma32(X, KF + 4, Q + 4))
    a("s_nop 15")
    a("v_max3_f32 v%d, v%d, v%d, v%d" % (mnew, X, X + 1, m))
    for i in range(2, 16, 2):
        a("v_max3_f32 v%d, v%d, v%d, v%d" % (mnew, mnew, X + i, X + i + 1))
    a("v_mov_b32 v%d, v%d" % (u0, mnew))
    a("s_nop 1")
    a("v_permlane32_swap_b32 v%d, v%d" % (mnew, u0))
    a("s_nop 1")
    a("v_max_f32 v%d, v%d, v%d" % (mnew, mnew, u0))
    a("v_sub_f32 v%d, v%d, v%d" % (al, m, mnew))
    a("v_exp_f32 v%d, v%d" % (al, al))
    a("v_mov_b32 v%d, v%d" % (m, mnew))
    for i in range(16):
        a("v_sub_f32 v%d, v%d, v%d" % (X + i, X + i, mnew))
    for i in range(16):
        a("v_exp_f32 v%d, v%d" % (X + i, X + i))
    for i in range(16):
        a("v_mul_f32 v%d, v%d, v%d" % (O + i, al, O + i))
    a("v_mul_f32 v%d, v%d, v%d" % (ls, al, ls))
    for i in range(16):
        a("v_add_f32 v%d, v%d, v%d" % (ls, ls, X + i))
    for i in range(8):
        a("v_cvt_pk_bf16_f32 v%d, v%d, v%d" % (P + i, X + 2 * i, X + 2 * i + 1))
    a("s_nop 1")
    a(mfma32(O, VF, P)); a(mfma32(O, VF + 4, P + 4))
    a("s_nop 15")
    a("v_add_u32 v%d, 4096, v%d" % (v_cur, v_cur))
    a("s_add_u32 s49, s49, 1\ns_cmp_lt_u32 s49, 8\ns_cbranch_scc1 %s" % SL2)
    a("s_add_u32 s48, s48, 1\ns_cmp_lt_u32 s48, 8\ns_cbranch_scc1 %s" % SL1)
    a("v_mov_b32 v%d, v%d" % (u0, ls))
    a("s_nop 1")
    a("v_permlane32_swap_b32 v%d, v%d" % (ls, u0))
    a("s_nop 1")
    a("v_add_f32 v%d, v%d, v%d" % (L, ls, u0))
    a("s_branch %s" % FIN)
    return V.hi
```

```python
from asmlib import *
from layout import *

XST = 32768
WBASE = 98304
WST = 12288
LDS1 = WBASE + 5 * WST

def gen_gemm1(a, name="qkv_kernel", do_mfma=True, do_reads=True, do_dma=True, do_epi=True, stamps=False, fake16=False):
    kernel_header(a, name)
    END = a.label("G1END")
    V = Regs(1, 256)
    v_lane = V.alloc()
    v_xd = [V.alloc(), V.alloc()]
    v_wd = V.alloc()
    v_xc = [V.alloc() for _ in range(4)]
    v_wc = V.alloc()
    v_xa = [V.alloc(), V.alloc()]
    v_wa = V.alloc()
    v_t = [V.alloc() for _ in range(8)]
    v_phi = V.alloc(8, 4)
    v_id = V.alloc(8, 4)
    ACC = V.alloc(96, 4)
    FR = V.alloc(80, 4)
    EX = V.alloc(24, 4)
    v_ones = V.alloc(4, 4)
    acc = lambda tile, seg: ACC + (tile * 3 + seg) * 16
    fx = lambda p, k, tile: FR + p * 40 + (k * 2 + tile) * 4
    fw = lambda p, k, seg: FR + p * 40 + 16 + (k * 3 + seg) * 4

    a("s_cmp_ge_u32 s2, 256")
    a("s_cbranch_scc1 %s" % END)
    ST = Stamps(a, stamps, 0)
    ST.stamp()
    a("""
    s_load_dwordx4 s[24:27], s[0:1], 0
    s_load_dwordx2 s[28:29], s[0:1], 16
    s_load_dwordx4 s[32:35], s[0:1], 32
    s_load_dwordx2 s[30:31], s[0:1], 72
    v_lshrrev_b32 v%d, 6, v0
    v_and_b32 v%d, 63, v0
    s_and_b32 s7, s2, 7
    v_readfirstlane_b32 s6, v%d
    s_lshr_b32 s3, s7, 2
    s_lshr_b32 s49, s2, 3
    s_and_b32 s4, s7, 1
    s_lshl_b32 s4, s4, 2
    s_and_b32 s50, s49, 3
    s_add_u32 s4, s4, s50
    s_bfe_u32 s5, s7, 0x10001
    s_lshl_b32 s5, s5, 3
    s_lshr_b32 s50, s49, 2
    s_add_u32 s5, s5, s50
    """ % (v_t[0], v_lane, v_t[0]))
    t0, t1, t2, t3 = v_t[0:4]
    a("v_lshrrev_b32 v%d, 3, v%d" % (t0, v_lane))
    a("v_and_b32 v%d, 7, v%d" % (t1, v_lane))
    a("v_lshrrev_b32 v%d, 4, v%d" % (t2, v_lane))
    a("v_xor_b32 v%d, v%d, v%d" % (t3, t1, t2))
    a("v_lshlrev_b32 v%d, 4, v%d" % (t3, t3))
    a("v_lshl_add_u32 v%d, v%d, 11, v%d" % (v_xd[0], t0, t3))
    a("v_xor_b32 v%d, 64, v%d" % (v_xd[1], v_xd[0]))
    a("v_add_u32 v%d, %d, v%d" % (v_xd[1], 16384 - 1024, v_xd[1]))
    a("v_and_b32 v%d, 1, v%d" % (t3, t2))
    a("v_lshlrev_b32 v%d, 2, v%d" % (t3, t3))
    a("v_xor_b32 v%d, v%d, v%d" % (t3, t3, t1))
    a("v_lshlrev_b32 v%d, 4, v%d" % (t3, t3))
    a("v_mul_u32_u24 v%d, 6144, v%d" % (v_wd, t0))
    a("v_add_u32 v%d, v%d, v%d" % (v_wd, v_wd, t3))
    a("s_waitcnt lgkmcnt(0)")
    a("""
    s_cmp_eq_u32 s3, 0
    s_cselect_b32 s8, s24, s32
    s_cselect_b32 s9, s25, s33
    s_cselect_b32 s12, s26, s34
    s_cselect_b32 s13, s27, s35
    s_lshl_b32 s7, s4, 19
    s_add_u32 s8, s8, s7
    s_addc_u32 s9, s9, 0
    s_mov_b32 s10, 0x80000
    s_mov_b32 s11, 0x20000
    s_lshl_b32 s7, s5, 7
    s_add_u32 s12, s12, s7
    s_addc_u32 s13, s13, 0
    s_sub_u32 s14, 0x600000, s7
    s_mov_b32 s15, 0x20000
    s_mov_b32 s16, s30
    s_mov_b32 s17, s31
    s_mov_b32 s18, %d
    s_mov_b32 s19, 0x20000
    s_mov_b32 s20, s28
    s_mov_b32 s21, s29
    s_mov_b32 s22, 0x10000
    s_mov_b32 s23, 0x20000
    """ % WS_SIZE)
    a("""
    s_lshl_b32 s40, s6, 16
    s_add_u32 s41, s40, 32768
    s_and_b32 s7, s6, 3
    s_mul_i32 s42, s7, %d
    s_add_u32 s43, s42, 4096
    s_lshr_b32 s49, s6, 2
    s_lshl_b32 s49, s49, 11
    s_add_u32 s42, s42, s49
    s_lshl_b32 s44, s6, 10
    s_lshl_b32 s45, s7, 10
    s_add_u32 s45, s45, 8192
    s_lshl_b32 s46, s6, 12
    s_add_u32 s47, s46, 2048
    s_cmp_lt_u32 s6, 4
    s_cselect_b64 vcc, -1, 0
    """ % (8 * 6144))
    q_lo, q_hi = [], []
    def issue(tag, grp=None):
        if grp in (None, 0): q_lo.append(tag)
        if grp in (None, 1): q_hi.append(tag)
    def wait_n(needed):
        n = 63
        for q in (q_lo, q_hi):
            last = -1
            for i, t in enumerate(q):
                if t in needed: last = i
            n = min(n, len(q) - 1 - last)
        return n

    a("v_and_b32 v%d, 31, v%d" % (t0, v_lane))
    a("v_lshrrev_b32 v%d, 5, v%d" % (t1, v_lane))
    a("v_lshlrev_b32 v%d, 1, v%d" % (t2, t0))
    a("v_lshl_add_u32 v%d, v%d, 8, v%d" % (t2, t1, t2))
    a("s_lshl_b32 s49, s5, 1")
    a("s_lshr_b32 s50, s6, 2")
    a("s_add_u32 s51, s49, s50")
    a("s_lshl_b32 s49, s51, 11")
    for r in range(16):
        d = 8 * (r >> 2) + (r & 3)
        a("buffer_load_ushort v%d, v%d, s[20:23], s49 offen offset:%d" % (FR + 40 + r, t2, d * 64))
        issue(("phi", 0))

    def dma_x(half, xw_sreg, stage, lst):
        g = ["s_add_u32 m0, %s, s%d" % (xw_sreg, 46 + half),
             "s_nop 0\nbuffer_load_dwordx4 v%d, s[8:11], s%d offen lds" % (v_xd[0], 40 + half)]
        lst.append("\n".join(g))
        lst.append("buffer_load_dwordx4 v%d, s[8:11], s%d offen offset:1024 lds\ns_add_u32 s%d, s%d, 128" % (v_xd[1], 40 + half, 40 + half, 40 + half))
        issue(("x", stage)); issue(("x", stage))
    def dma_w(wr_sreg, v, lst):
        lst.append("s_add_u32 m0, %s, s44\ns_nop 0\nbuffer_load_dwordx4 v%d, s[12:15], s42 offen lds\ns_add_u32 s42, s42, %d" % (wr_sreg, v_wd, 32 * 6144))
        issue(("w", v))
        L = a.label("SK")
        br = "s_cbranch_vccz" if v % 2 == 0 else "s_cbranch_vccnz"
        lst.append("%s %s\ns_add_u32 m0, %s, s45\ns_nop 0\nbuffer_load_dwordx4 v%d, s[12:15], s43 offen lds\n%s:\ns_add_u32 s43, s43, %d" % (br, L, wr_sreg, v_wd, L, 32 * 6144))
        issue(("w", v), v % 2)

    pro = []
    def pro_x(st):
        a("s_mov_b32 s38, %d" % (st * XST)); l = []; dma_x(0, "s38", st, l); dma_x(1, "s38", st, l); [a(x) for x in l]
    def pro_w(v):
        a("s_mov_b32 s36, %d" % (WBASE + v * WST)); l = []; dma_w("s36", v, l); [a(x) for x in l]
    if do_dma:
        pro_x(0); pro_w(0); pro_w(1); pro_x(1); pro_w(2); pro_w(3); pro_x(2); pro_w(4)

    a("s_and_b32 s7, s6, 3")
    a("s_lshl_b32 s7, s7, 13")
    a("v_lshlrev_b32 v%d, 7, v%d" % (t2, t0))
    a("v_add_u32 v%d, s7, v%d" % (t2, t2))
    a("v_bfe_u32 v%d, v%d, 1, 3" % (t3, v_lane))
    a("v_xor_b32 v%d, v%d, v%d" % (t3, t3, t1))
    for kk in range(4):
        a("v_xor_b32 v%d, %d, v%d" % (v_xc[kk], 2 * kk, t3))
        a("v_lshl_add_u32 v%d, v%d, 4, v%d" % (v_xc[kk], v_xc[kk], t2))
    t4, t5, t6, t7 = v_t[4:8]
    a("v_bfe_u32 v%d, v%d, 2, 2" % (t4, v_lane))
    a("v_lshl_add_u32 v%d, v%d, 3, v%d" % (t5, t1, t4))
    a("v_bfe_u32 v%d, v%d, 4, 1" % (t6, v_lane))
    a("v_bfe_u32 v%d, v%d, 1, 1" % (t7, v_lane))
    a("v_lshl_add_u32 v%d, v%d, 1, v%d" % (t6, t6, t7))
    a("s_lshr_b32 s7, s6, 2")
    a("s_lshl_b32 s7, s7, 2")
    a("v_add_u32 v%d, s7, v%d" % (t6, t6))
    a("v_bfe_u32 v%d, v%d, 3, 1" % (t7, v_lane))
    a("v_lshlrev_b32 v%d, 2, v%d" % (t7, t7))
    a("v_xor_b32 v%d, v%d, v%d" % (t6, t6, t7))
    a("v_lshlrev_b32 v%d, 4, v%d" % (t6, t6))
    a("v_lshl_add_u32 v%d, v%d, 7, v%d" % (v_wc, t5, t6))
    a("v_and_b32 v%d, 1, v%d" % (t7, v_lane))
    a("v_lshl_add_u32 v%d, v%d, 3, v%d" % (v_wc, t7, v_wc))
    a("v_lshlrev_b32 v%d, 2, v%d" % (t2, t1))
    a("v_sub_u32 v%d, v%d, v%d" % (t2, t0, t2))
    a("v_mov_b32 v%d, 0x3f80" % t4)
    a("v_mov_b32 v%d, 0x3f800000" % t5)
    for i in range(8):
        t, jj = i >> 2, i & 3
        base = 16 * t + 8 * (jj >> 1) + 2 * (jj & 1)
        a("v_cmp_eq_u32 s[52:53], %d, v%d" % (base, t2))
        a("v_cmp_eq_u32 s[54:55], %d, v%d" % (base + 1, t2))
        a("s_nop 1")
        a("v_cndmask_b32 v%d, 0, v%d, s[52:53]" % (v_id + i, t4))
        a("v_cndmask_b32 v%d, v%d, v%d, s[54:55]" % (v_id + i, v_id + i, t5))
    for i in range(4):
        a("v_mov_b32 v%d, 0x3f803f80" % (v_ones + i))

    def reads(p, half):
        l = []
        for k in range(2):
            for seg in range(3):
                for pp in range(2):
                    l.append("ds_read_b64_tr_b16 %s, v%d offset:%d" % (vr(fw(p, k, seg) + 2 * pp, 2), v_wa, seg * 4096 + k * 2048 + pp * 512))
                if seg < 2:
                    l.append("ds_read_b128 %s, v%d offset:%d" % (vr(fx(p, k, seg), 4), v_xa[k], seg * 4096))
        return l if do_reads else []
    def mfmas(p, first=False):
        l = []
        for k in range(2):
            for tile in range(2):
                for seg in range(3):
                    c = "0" if (first and k == 0) else None
                    if seg < 2:
                        l.append(mfma32(acc(tile, seg), fw(p, k, seg), fx(p, k, tile), c))
                    else:
                        l.append(mfma32(acc(tile, seg), fx(p, k, tile), fw(p, k, seg), c))
        if fake16:
            l = []
            for tile in range(4):
                for seg in range(6):
                    l.append(mfma16(ACC + (tile * 6 + seg) * 4, FR + p * 40 + 16 + seg * 4, FR + p * 40 + tile * 4, "0" if first else None))
            l = ["\n".join(l[i:i + 2]) for i in range(0, 24, 2)]
        return l if do_mfma else ["s_nop 0"]
    def addr_calc(half, xr, wr):
        return ["v_add_u32 v%d, %s, v%d" % (v_xa[0], xr, v_xc[2 * half]),
                "v_add_u32 v%d, %s, v%d" % (v_xa[1], xr, v_xc[2 * half + 1]),
                "v_add_u32 v%d, %s, v%d" % (v_wa, wr, v_wc)]

    a("s_mov_b32 s38, 0")
    a("s_mov_b32 s36, %d" % WBASE)
    for x in addr_calc(0, "s38", "s36"): a(x)
    a("s_waitcnt vmcnt(%d)" % wait_n({("x", 0), ("w", 0), ("phi", 0)}))
    a("s_barrier")
    ST.stamp()
    for x in reads(0, 0): a(x)
    for i in range(8):
        a("v_lshl_or_b32 v%d, v%d, 16, v%d" % (v_phi + i, FR + 40 + 2 * i + 1, FR + 40 + 2 * i))

    def ring_w():
        return "s_add_u32 s37, s36, %d\ns_cmp_eq_u32 s37, %d\ns_cselect_b32 s37, %d, s37" % (WST, WBASE + 5 * WST, WBASE)
    def ring_x():
        return "s_add_u32 s39, s38, %d\ns_cmp_eq_u32 s39, %d\ns_cselect_b32 s39, 0, s39" % (XST, 3 * XST)

    def slot(u, emit=True, xr="s39"):
        p = u & 1
        out = []
        last = (u == 31)
        out.append(ring_w())
        if u % 2 == 1:
            out.append(ring_x())
        if not last:
            out += addr_calc((u + 1) & 1, xr, "s37")
        n = wait_n({("x", (u + 1) >> 1), ("w", u + 1)})
        out.append(("WAIT", n))
        out.append("s_barrier")
        fill = [] if last else reads(1 - p, (u + 1) & 1)
        dm = []
        if do_dma:
            if u >= 1 and (u - 1) // 2 + 3 <= 15:
                dma_x((u - 1) & 1, "s38", (u - 1) // 2 + 3, dm)
            if u + 5 <= 31:
                dma_w("s36", u + 5, dm)
        mm = mfmas(p, first=(u == 0))
        groups = ["\n".join(fill[i:i + 2]) for i in range(0, len(fill), 2)] + dm
        out += interleave(mm, groups, 0, 1)
        out.append("s_mov_b32 s36, s37")
        if u % 2 == 0 and u > 0:
            out.append("s_mov_b32 s38, s39")
        return out, n
    def emit(out, n):
        for x in out:
            if isinstance(x, tuple): a("s_waitcnt vmcnt(%d) lgkmcnt(0)" % n)
            else: a(x)

    o, n = slot(0, xr="s38"); emit(o, n)
    bodies = []
    for t in range(13):
        bodies.append((slot(2 * t + 1), slot(2 * t + 2)))
    n1 = min(b[0][1] for b in bodies); n2 = min(b[1][1] for b in bodies)
    a("s_mov_b32 s48, 13")
    LOOP = a.label("G1LOOP")
    a(".p2align 6")
    a(LOOP + ":")
    emit(bodies[0][0][0], n1); emit(bodies[0][1][0], n2)
    a("s_sub_u32 s48, s48, 1\ns_cmp_lg_u32 s48, 0\ns_cbranch_scc1 %s" % LOOP)
    for u in range(27, 32):
        o, n = slot(u); emit(o, n)
    a("s_nop 15")
    ST.stamp()
    if not do_epi:
        ST.dump("s[16:19]", "s6", ACC)
        a("s_branch %s" % END)

    v16 = t0
    a("v_lshlrev_b32 v%d, 4, v%d" % (v16, v_lane))
    a("s_and_b32 s7, s6, 3\ns_lshl_b32 s7, s7, 1\ns_lshl_b32 s52, s4, 3\ns_add_u32 s52, s52, s7")
    a("s_lshl_b32 s53, s51, 6\ns_add_u32 s53, s53, s52")
    EPA = a.label("EPA")
    a("s_cmp_eq_u32 s3, 0\ns_cbranch_scc1 %s" % EPA)
    QP, KP, VP = EX, EX + 8, EX + 16
    def pack(dst, src):
        for i in range(8):
            a("v_cvt_pk_bf16_f32 v%d, v%d, v%d" % (dst + i, src + 2 * i, src + 2 * i + 1))
    a("s_lshl_b32 s54, s53, 11\ns_add_u32 s54, s54, %d" % WS_QB)
    a("s_lshl_b32 s55, s53, 12\ns_add_u32 s55, s55, %d\ns_add_u32 s56, s55, 4096" % WS_KVB)
    a("s_mov_b32 s57, 0x%08x" % f2u(LOG2E * 32 ** -0.5))
    for tile in range(2):
        P0 = FR + tile * 24
        for i in range(16):
            a("v_mul_f32 v%d, s57, v%d" % (acc(tile, 0) + i, acc(tile, 0) + i))
        pack(P0 + 8, acc(tile, 1))
        for t in range(2):
            a("buffer_store_dwordx4 %s, v%d, s[16:19], s%d offen offset:%d" % (vr(P0 + 8 + 4 * t, 4), v16, 55 + tile, t * 1024))
        pack(P0 + 16, acc(tile, 2))
        for t in range(2):
            a("buffer_store_dwordx4 %s, v%d, s[16:19], s%d offen offset:%d" % (vr(P0 + 16 + 4 * t, 4), v16, 55 + tile, 2048 + t * 1024))
        pack(P0, acc(tile, 0))
        for t in range(2):
            a("buffer_store_dwordx4 %s, v%d, s[16:19], s54 offen offset:%d" % (vr(P0 + 4 * t, 4), v16, tile * 2048 + t * 1024))
    ST.dump("s[16:19]", "s6", ACC)
    a("s_endpgm")
    a(EPA + ":")
    a("s_lshl_b32 s54, s53, 11\ns_add_u32 s54, s54, %d" % WS_QA)
    a("s_mov_b32 s57, 0x%08x" % f2u(LOG2E))
    KVP_, KVM_, ZP_, ZM_ = FR, FR + 16, FR + 32, FR + 48
    QS = FR + 64
    mx, mn, u0, u1, sp, sm = t1, t2, t3, t4, t5, t6
    for tile in range(2):
        pack(QS + 8 * tile, acc(tile, 0))
        for t in range(2):
            a("buffer_store_dwordx4 %s, v%d, s[16:19], s54 offen offset:%d" % (vr(QS + 8 * tile + 4 * t, 4), v16, tile * 2048 + t * 1024))
    for tile in range(2):
        X = acc(tile, 1); E = acc(tile, 0)
        pack(KP, X)
        pack(VP, acc(tile, 2))
        a(mfma32(X, v_phi, KP, "0"))
        a(mfma32(X, v_phi + 4, KP + 4))
        a("s_nop 15")
        softmax_pm(a, X, E, KP, QP, mx, mn, u0, u1, sp, sm, "s57")
        a("s_nop 1")
        a(mfma32(X, KP, v_id, "0"))
        a(mfma32(X, KP + 4, v_id + 4))
        a(mfma32(E, QP, v_id, "0"))
        a(mfma32(E, QP + 4, v_id + 4))
        a("s_nop 15")
        pack(KP, X)
        pack(QP, E)
        a("s_nop 1")
        c = "0" if tile == 0 else None
        a(mfma32(KVP_, KP, VP, c)); a(mfma32(KVM_, QP, VP, c)); a(mfma32(ZP_, KP, v_ones, c)); a(mfma32(ZM_, QP, v_ones, c))
        a(mfma32(KVP_, KP + 4, VP + 4)); a(mfma32(KVM_, QP + 4, VP + 4)); a(mfma32(ZP_, KP + 4, v_ones)); a(mfma32(ZM_, QP + 4, v_ones))
    a("s_nop 15")
    a("s_lshl_b32 s7, s6, 13")
    a("v_add_u32 v%d, s7, v%d" % (t1, v16))
    for b in range(8):
        a("ds_write_b128 v%d, %s offset:%d" % (t1, vr(FR + 4 * b, 4), b * 1024))
    a("v_lshrrev_b32 v%d, 5, v%d" % (t2, v_lane))
    a("v_lshlrev_b32 v%d, 7, v%d" % (t2, t2))
    a("s_lshl_b32 s7, s6, 8\ns_add_u32 s7, s7, 65536")
    a("v_add_u32 v%d, s7, v%d" % (t3, t2))
    a("s_mov_b32 s58, 1\ns_mov_b32 s59, 1")
    a("s_mov_b64 exec, s[58:59]")
    for b in range(8):
        a("ds_write_b128 v%d, %s offset:%d" % (t3, vr(FR + 32 + 4 * b, 4), b * 16))
    a("s_mov_b64 exec, -1")
    a("s_lshr_b32 s7, s6, 2\ns_lshl_b32 s49, s7, 15\ns_and_b32 s50, s6, 3\ns_lshl_b32 s60, s50, 11\ns_add_u32 s49, s49, s60")
    a("v_add_u32 v%d, s49, v%d" % (t1, v16))
    a("s_lshl_b32 s49, s7, 10\ns_lshl_b32 s61, s50, 5\ns_add_u32 s49, s49, s61\ns_add_u32 s49, s49, 65536")
    a("v_add_u32 v%d, s49, v%d" % (t3, t2))
    a("s_waitcnt lgkmcnt(0)\ns_barrier")
    R = ACC
    for bb in range(2):
        for i in range(4):
            a("ds_read_b128 %s, v%d offset:%d" % (vr(R + (bb * 4 + i) * 4, 4), t1, i * 8192 + bb * 1024))
    for bb in range(2):
        for i in range(4):
            a("ds_read_b128 %s, v%d offset:%d" % (vr(R + 32 + (bb * 4 + i) * 4, 4), t3, i * 256 + bb * 16))
    a("s_lshl_b32 s49, s51, 3\ns_add_u32 s49, s49, s4")
    a("s_lshl_b32 s54, s49, 13\ns_add_u32 s54, s54, s60\ns_add_u32 s54, s54, %d" % WS_KVP)
    a("s_lshl_b32 s55, s49, 8\ns_add_u32 s55, s55, s61\ns_add_u32 s55, s55, %d" % WS_ZP)
    a("s_waitcnt lgkmcnt(0)")
    for g in range(4):
        B0 = R + g * 16
        for j in range(4):
            a("v_add_f32 v%d, v%d, v%d" % (B0 + j, B0 + j, B0 + 4 + j))
            a("v_add_f32 v%d, v%d, v%d" % (B0 + 8 + j, B0 + 8 + j, B0 + 12 + j))
        for j in range(4):
            a("v_add_f32 v%d, v%d, v%d" % (B0 + j, B0 + j, B0 + 8 + j))
    for bb in range(2):
        a("buffer_store_dwordx4 %s, v%d, s[16:19], s54 offen offset:%d" % (vr(R + bb * 16, 4), v16, bb * 1024))
    a("s_mov_b64 exec, s[58:59]")
    for bb in range(2):
        a("buffer_store_dwordx4 %s, v%d, s[16:19], s55 offen offset:%d" % (vr(R + 32 + bb * 16, 4), t2, bb * 16))
    ST.dump("s[16:19]", "s6", ACC)
    a(END + ":")
    a("s_endpgm")
    return V.hi

def softmax_pm(a, X, E, PP, PM, mx, mn, u0, u1, sp, sm, sL):
    a("v_max3_f32 v%d, v%d, v%d, v%d" % (mx, X, X + 1, X + 2))
    a("v_min3_f32 v%d, v%d, v%d, v%d" % (mn, X, X + 1, X + 2))
    for i in range(3, 15, 2):
        a("v_max3_f32 v%d, v%d, v%d, v%d" % (mx, mx, X + i, X + i + 1))
        a("v_min3_f32 v%d, v%d, v%d, v%d" % (mn, mn, X + i, X + i + 1))
    a("v_max_f32 v%d, v%d, v%d" % (mx, mx, X + 15))
    a("v_min_f32 v%d, v%d, v%d" % (mn, mn, X + 15))
    a("v_mov_b32 v%d, v%d" % (u0, mx))
    a("v_mov_b32 v%d, v%d" % (u1, mn))
    a("s_nop 1")
    a("v_permlane32_swap_b32 v%d, v%d" % (mx, u0))
    a("v_permlane32_swap_b32 v%d, v%d" % (mn, u1))
    a("s_nop 1")
    a("v_max_f32 v%d, v%d, v%d" % (mx, mx, u0))
    a("v_min_f32 v%d, v%d, v%d" % (mn, mn, u1))
    a("v_mul_f32 v%d, %s, v%d" % (mx, sL, mx))
    a("v_mul_f32 v%d, %s, v%d" % (mn, sL, mn))
    for i in range(16):
        a("v_fma_f32 v%d, -v%d, %s, v%d" % (E + i, X + i, sL, mn))
        a("v_fma_f32 v%d, v%d, %s, -v%d" % (X + i, X + i, sL, mx))
    for i in range(16):
        a("v_exp_f32 v%d, v%d" % (E + i, E + i))
        a("v_exp_f32 v%d, v%d" % (X + i, X + i))
    a("v_add_f32 v%d, v%d, v%d" % (sm, E, E + 1))
    a("v_add_f32 v%d, v%d, v%d" % (sp, X, X + 1))
    a("v_add_f32 v%d, v%d, v%d" % (u1, E + 2, E + 3))
    a("v_add_f32 v%d, v%d, v%d" % (u0, X + 2, X + 3))
    for i in range(4, 16, 2):
        a("v_add_f32 v%d, v%d, v%d" % (sm, sm, E + i))
        a("v_add_f32 v%d, v%d, v%d" % (sp, sp, X + i))
        a("v_add_f32 v%d, v%d, v%d" % (u1, u1, E + i + 1))
        a("v_add_f32 v%d, v%d, v%d" % (u0, u0, X + i + 1))
    a("v_add_f32 v%d, v%d, v%d" % (sm, sm, u1))
    a("v_add_f32 v%d, v%d, v%d" % (sp, sp, u0))
    a("v_mov_b32 v%d, v%d" % (u1, sm))
    a("v_mov_b32 v%d, v%d" % (u0, sp))
    a("s_nop 1")
    a("v_permlane32_swap_b32 v%d, v%d" % (sm, u1))
    a("v_permlane32_swap_b32 v%d, v%d" % (sp, u0))
    a("s_nop 1")
    a("v_add_f32 v%d, v%d, v%d" % (sm, sm, u1))
    a("v_add_f32 v%d, v%d, v%d" % (sp, sp, u0))
    a("v_rcp_f32 v%d, v%d" % (sm, sm))
    a("v_rcp_f32 v%d, v%d" % (sp, sp))
    a("s_nop 0")
    for i in range(16):
        a("v_mul_f32 v%d, v%d, v%d" % (E + i, sm, E + i))
        a("v_mul_f32 v%d, v%d, v%d" % (X + i, sp, X + i))
    for i in range(8):
        a("v_cvt_pk_bf16_f32 v%d, v%d, v%d" % (PM + i, E + 2 * i, E + 2 * i + 1))
        a("v_cvt_pk_bf16_f32 v%d, v%d, v%d" % (PP + i, X + 2 * i, X + 2 * i + 1))
```

```python
from asmlib import *
from layout import *

BLOCK = 512
STG = 32768
NST = 5
LDS3 = NST * STG

def gen_gemm3(a, name="oproj_kernel", stamps=False, do_mfma=True):
    kernel_header(a, name)
    END = a.label("G3END")
    V = Regs(1, 256)
    v_lane = V.alloc(); v16 = V.alloc()
    v_wd = [V.alloc(), V.alloc()]
    v_oc = V.alloc(); v_wc = [V.alloc() for _ in range(4)]
    v_oa = V.alloc(); v_wa = [V.alloc() for _ in range(4)]
    t = [V.alloc() for _ in range(6)]
    ACC = V.alloc(32, 4)
    FR = V.alloc(96, 4)
    acc = lambda T, ct: ACC + (T * 4 + ct) * 4
    fo = lambda p, hd, T: FR + p * 48 + hd * 24 + T * 4
    fw = lambda p, hd, ct: FR + p * 48 + hd * 24 + 8 + ct * 4
    ST = Stamps(a, stamps, 2)
    a("s_cmp_ge_u32 s2, 256\ns_cbranch_scc1 %s" % END)
    ST.stamp()
    a("""
    s_load_dwordx2 s[24:25], s[0:1], 24
    s_load_dwordx4 s[28:31], s[0:1], 48
    s_load_dwordx2 s[26:27], s[0:1], 72
    v_lshrrev_b32 v%d, 6, v0
    v_and_b32 v%d, 63, v0
    s_and_b32 s7, s2, 7
    v_readfirstlane_b32 s6, v%d
    s_lshr_b32 s3, s7, 2
    s_lshr_b32 s49, s2, 3
    s_and_b32 s4, s7, 3
    s_lshl_b32 s4, s4, 2
    s_and_b32 s50, s49, 3
    s_add_u32 s4, s4, s50
    s_lshr_b32 s5, s49, 2
    v_lshlrev_b32 v%d, 4, v%d
    """ % (t[0], v_lane, t[0], v16, v_lane))
    a("v_lshrrev_b32 v%d, 4, v%d" % (t[0], v_lane))
    a("v_and_b32 v%d, 15, v%d" % (t[1], v_lane))
    a("v_lshlrev_b32 v%d, 1, v%d" % (t[2], t[0]))
    a("v_xor_b32 v%d, v%d, v%d" % (t[2], t[2], t[1]))
    a("v_lshlrev_b32 v%d, 4, v%d" % (t[2], t[2]))
    a("v_lshl_add_u32 v%d, v%d, 11, v%d" % (v_wd[0], t[0], t[2]))
    a("v_xor_b32 v%d, 128, v%d" % (v_wd[1], v_wd[0]))
    a("v_add_u32 v%d, %d, v%d" % (v_wd[1], 8192 - 1024, v_wd[1]))
    a("s_lshl_b32 s40, s3, 22\ns_lshl_b32 s7, s4, 18\ns_add_u32 s40, s40, s7\ns_lshr_b32 s7, s6, 1\ns_lshl_b32 s7, s7, 16\ns_add_u32 s40, s40, s7")
    a("s_and_b32 s7, s6, 1\ns_lshl_b32 s7, s7, 11\ns_add_u32 s40, s40, s7\ns_add_u32 s40, s40, %d" % WS_O)
    a("s_lshl_b32 s41, s6, 14\ns_lshl_b32 s7, s5, 8\ns_add_u32 s41, s41, s7")
    a("s_lshl_b32 s44, s6, 11\ns_add_u32 s45, s44, 16384")
    a("s_waitcnt lgkmcnt(0)")
    a("""
    s_cmp_eq_u32 s3, 0
    s_cselect_b32 s12, s24, s28
    s_cselect_b32 s13, s25, s29
    s_mov_b32 s14, 0x200000
    s_mov_b32 s15, 0x20000
    s_mov_b32 s16, s26
    s_mov_b32 s17, s27
    s_mov_b32 s18, %d
    s_mov_b32 s19, 0x20000
    s_mov_b32 s20, s30
    s_mov_b32 s21, s31
    s_mov_b32 s22, 0x800000
    s_mov_b32 s23, 0x20000
    """ % WS_SIZE)
    def dma(wr):
        return ["s_add_u32 m0, %s, s44\ns_nop 0\nbuffer_load_dwordx4 v%d, s[16:19], s40 offen lds" % (wr, v16),
                "buffer_load_dwordx4 v%d, s[16:19], s40 offen offset:1024 lds\ns_add_u32 s40, s40, 4096" % v16,
                "s_add_u32 m0, %s, s45\ns_nop 0\nbuffer_load_dwordx4 v%d, s[12:15], s41 offen lds" % (wr, v_wd[0]),
                "buffer_load_dwordx4 v%d, s[12:15], s41 offen offset:1024 lds\ns_add_u32 s41, s41, 131072" % v_wd[1]]
    for s in range(NST):
        for x in dma("%d" % (s * STG)): a(x)
    a("s_and_b32 s7, s6, 3\ns_lshl_b32 s7, s7, 12")
    a("v_lshlrev_b32 v%d, 9, v%d" % (t[2], t[0]))
    a("v_lshl_add_u32 v%d, v%d, 4, v%d" % (t[2], t[1], t[2]))
    a("v_add_u32 v%d, s7, v%d" % (v_oc, t[2]))
    a("v_bfe_u32 v%d, v%d, 2, 3" % (t[2], v_lane))
    a("v_bfe_u32 v%d, v%d, 5, 1" % (t[3], v_lane))
    a("v_lshl_add_u32 v%d, v%d, 4, v%d" % (t[3], t[3], t[2]))
    a("v_lshlrev_b32 v%d, 8, v%d" % (t[3], t[3]))
    a("v_and_b32 v%d, 1, v%d" % (t[4], v_lane))
    a("v_lshl_add_u32 v%d, v%d, 3, v%d" % (t[3], t[4], t[3]))
    a("v_add_u32 v%d, 16384, v%d" % (t[3], t[3]))
    a("v_lshlrev_b32 v%d, 1, v%d" % (t[2], t[2]))
    a("v_bfe_u32 v%d, v%d, 1, 1" % (t[4], v_lane))
    a("v_or_b32 v%d, v%d, v%d" % (t[2], t[2], t[4]))
    a("s_lshr_b32 s7, s6, 2\ns_lshl_b32 s7, s7, 3")
    a("v_xor_b32 v%d, s7, v%d" % (t[2], t[2]))
    for ct in range(4):
        a("v_xor_b32 v%d, %d, v%d" % (t[4], ct * 2, t[2]))
        a("v_lshl_add_u32 v%d, v%d, 4, v%d" % (v_wc[ct], t[4], t[3]))

    def addr(rd):
        return ["v_add_u32 v%d, %s, v%d" % (v_oa, rd, v_oc)] + ["v_add_u32 v%d, %s, v%d" % (v_wa[ct], rd, v_wc[ct]) for ct in range(4)]
    def reads(p):
        l = []
        for hd in range(2):
            for ct in range(4):
                for pp in range(2):
                    l.append("ds_read_b64_tr_b16 %s, v%d offset:%d" % (vr(fw(p, hd, ct) + 2 * pp, 2), v_wa[ct], hd * 8192 + pp * 2048))
                if ct < 2:
                    l.append("ds_read_b128 %s, v%d offset:%d" % (vr(fo(p, hd, ct), 4), v_oa, hd * 2048 + ct * 256))
        return l
    def mfmas(p, first):
        l = []
        for hd in range(2):
            for T in range(2):
                for ct in range(4):
                    l.append(mfma16(acc(T, ct), fw(p, hd, ct), fo(p, hd, T), "0" if (first and hd == 0) else None))
        return l if do_mfma else ["s_nop 0"]
    a("s_mov_b32 s36, 0")
    for x in addr("s36"): a(x)
    a("s_waitcnt vmcnt(%d)\ns_barrier" % (4 * (NST - 1)))
    ST.stamp()
    for x in reads(0): a(x)
    def slot(s):
        last = s == 15
        a("s_add_u32 s37, s36, %d\ns_cmp_eq_u32 s37, %d\ns_cselect_b32 s37, 0, s37" % (STG, NST * STG))
        if not last:
            for x in addr("s37"): a(x)
        issued = min(16, s + NST)
        n = max(0, 4 * (issued - (s + 2)))
        a("s_waitcnt vmcnt(%d) lgkmcnt(0)" % n)
        if not last: a("s_barrier")
        rd = [] if last else reads(1 - (s & 1))
        dm = dma("s36") if s + NST <= 15 else []
        groups = ["\n".join(rd[i:i + 2]) for i in range(0, len(rd), 2)]
        groups = dm + groups
        for x in interleave(mfmas(s & 1, s == 0), groups, 0, 1): a(x)
        a("s_mov_b32 s36, s37")
    slot(0)
    nloop = (15 - NST) // 2
    a("s_mov_b32 s48, %d" % nloop)
    LOOP = a.label("G3LOOP")
    a(".p2align 6\n%s:" % LOOP)
    slot(1); slot(2)
    a("s_sub_u32 s48, s48, 1\ns_cmp_lg_u32 s48, 0\ns_cbranch_scc1 %s" % LOOP)
    for s in range(2 * nloop + 1, 16): slot(s)
    ST.stamp()
    a("v_and_b32 v%d, 15, v%d" % (t[1], v_lane))
    a("v_lshlrev_b32 v%d, 12, v%d" % (t[1], t[1]))
    a("v_bfe_u32 v%d, v%d, 4, 1" % (t[2], v_lane))
    a("v_lshl_add_u32 v%d, v%d, 5, v%d" % (t[1], t[2], t[1]))
    a("v_bfe_u32 v%d, v%d, 5, 1" % (t[2], v_lane))
    a("v_lshl_add_u32 v%d, v%d, 4, v%d" % (t[1], t[2], t[1]))
    a("s_lshl_b32 s54, s4, 19\ns_and_b32 s7, s6, 3\ns_lshl_b32 s7, s7, 17\ns_add_u32 s54, s54, s7")
    a("s_lshl_b32 s7, s3, 11\ns_add_u32 s54, s54, s7\ns_lshl_b32 s7, s5, 8\ns_add_u32 s54, s54, s7")
    a("s_lshr_b32 s7, s6, 2\ns_lshl_b32 s7, s7, 7\ns_add_u32 s54, s54, s7\ns_add_u32 s55, s54, 65536")
    for T in range(2):
        for pr in range(2):
            D = FR + (T * 2 + pr) * 4
            X, Y = acc(T, 2 * pr), acc(T, 2 * pr + 1)
            a("v_cvt_pk_bf16_f32 v%d, v%d, v%d" % (D, X, X + 1))
            a("v_cvt_pk_bf16_f32 v%d, v%d, v%d" % (D + 1, X + 2, X + 3))
            a("v_cvt_pk_bf16_f32 v%d, v%d, v%d" % (D + 2, Y, Y + 1))
            a("v_cvt_pk_bf16_f32 v%d, v%d, v%d" % (D + 3, Y + 2, Y + 3))
    a("s_nop 1")
    for T in range(2):
        for pr in range(2):
            D = FR + (T * 2 + pr) * 4
            a("v_permlane16_swap_b32 v%d, v%d" % (D, D + 2))
            a("v_permlane16_swap_b32 v%d, v%d" % (D + 1, D + 3))
            a("buffer_store_dwordx4 %s, v%d, s[20:23], s%d offen offset:%d" % (vr(D, 4), t[1], 54 + T, pr * 64))
    ST.dump("s[16:19]", "s6", ACC)
    a(END + ":\ns_endpgm")
    return V.hi
```

```python
MB = 1 << 20
WS_QB = 0
WS_KVB = 4 * MB
WS_QA = 12 * MB
WS_KVP = 16 * MB
WS_ZP = 18 * MB
WS_O = 20 * MB
WS_SIZE = 268435456
LOG2E = 1.4426950408889634
import struct
def f2u(x):
    return struct.unpack("<I", struct.pack("<f", x))[0]
```

```python
import sys
sys.path.insert(0, "gen")
from asmlib import *
import gemm1

HDR = open("concat_heads__linear_kernel_hedgehog__mha_block__prompt.s.ref").read().split("; Override launch")[0]

def build(parts, opts=None):
    opts = opts or {}
    a = Asm()
    launches = []
    descs = []
    if "g1" in parts:
        nv = gemm1.gen_gemm1(a, "qkv_kernel", **opts.get("g1", {}))
        launches.append("; @launch kernel=qkv_kernel grid=(256,1,1) block=(512,1,1) lds=%d" % gemm1.LDS1)
        descs.append(("qkv_kernel", nv))
    if "att" in parts:
        import attn
        nv = attn.gen_attn(a, "attn_kernel", **opts.get("att", {}))
        launches.append("; @launch kernel=attn_kernel grid=(256,1,1) block=(%d,1,1) lds=%d" % (attn.BLOCK, attn.LDS2))
        descs.append(("attn_kernel", nv))
    if "g3" in parts:
        import gemm3
        nv = gemm3.gen_gemm3(a, "oproj_kernel", **opts.get("g3", {}))
        launches.append("; @launch kernel=oproj_kernel grid=(256,1,1) block=(%d,1,1) lds=%d" % (gemm3.BLOCK, gemm3.LDS3))
        descs.append(("oproj_kernel", nv))
    for n, nv in descs:
        kernel_desc(a, n, nv)
    return HDR + "\n".join(launches) + "\n" + '.amdgcn_target "amdgcn-amd-amdhsa--gfx950"\n' + a.text()

if __name__ == "__main__":
    out = sys.argv[1]
    parts = sys.argv[2].split(",")
    opts = eval(sys.argv[3]) if len(sys.argv) > 3 else {}
    open(out, "w").write(build(parts, opts))
```
